```python
import torch

def _softmax(x, axis=-1):
    return torch.softmax(x, dim=axis)
def _gelu(x):
    return torch.nn.functional.gelu(x, approximate="tanh")
def _silu(x):
    return torch.nn.functional.silu(x)
def _sigmoid(x):
    return torch.sigmoid(x)
def _layernorm(x, axis=-1, eps=1e-5):
    m = x.mean(dim=axis, keepdim=True)
    v = x.var(dim=axis, keepdim=True, unbiased=False)
    return (x - m) / torch.sqrt(v + eps)
def _scatter_add(tgt, idx, src, axis=0):
    return tgt.clone().index_add_(axis, idx, src)
def _segment_sum(src, seg, n):
    out = torch.zeros((n,) + src.shape[1:], dtype=src.dtype)
    return out.index_add_(0, seg, src)
def _pad(x, pw):
    flat = tuple(v for pair in reversed(pw) for v in pair)
    return torch.nn.functional.pad(x, flat)

kernel_name = 'standalone__gqa_softmax__near_ridge'

def setup_inputs():

    _w = (lambda a: (lambda t: t.to(torch.bfloat16) if t.is_floating_point() else t)(torch.as_tensor(a)))
    B, Hq, Hkv, Sq, Sk, D = 16, 32, 32, 736, 512, 128
    return {
        "q": _w((lambda *s: torch.randn(*s, dtype=torch.bfloat16) * 0.8)(B, Hq, Sq, D)),
        "k": _w((lambda *s: torch.randn(*s, dtype=torch.bfloat16) * 0.8)(B, Hkv, Sk, D)),
        "v": _w((lambda *s: torch.randn(*s, dtype=torch.bfloat16) * 0.05)(B, Hkv, Sk, D)),
    }

def reference(q, k, v):
    B, Hq, Sq, D = q.shape
    Hkv = k.shape[1]
    rep = Hq // Hkv
    k = (lambda x, n, axis: torch.repeat_interleave(x, n, dim=axis))(k, rep, axis=1)
    v = (lambda x, n, axis: torch.repeat_interleave(x, n, dim=axis))(v, rep, axis=1)
    scale = D ** -0.5
    scores = torch.einsum("bhqd,bhkd->bhqk", q, k) * scale
    p = _softmax(scores, axis=-1)
    return torch.einsum("bhqk,bhkd->bhqd", p, v)
```

```python
import re

TRANS = ("v_exp_f32", "v_rcp_f32", "v_log_f32", "v_rsq_f32", "v_sqrt_f32")

def regs_of(tok):
    tok = tok.strip()
    tok = tok.lstrip("-").replace("|", "")
    m = re.fullmatch(r"([vas])\[(\d+):(\d+)\]", tok)
    if m:
        return [m.group(1) + str(i) for i in range(int(m.group(2)), int(m.group(3)) + 1)]
    if re.fullmatch(r"[vas]\d+", tok):
        return [tok]
    if tok in ("vcc", "m0", "exec"):
        return [tok]
    return []

class Ins:
    def __init__(self, text, tag=None):
        self.text = text
        self.tag = tag
        t = text.split(";")[0].strip()
        self.label = t.endswith(":") or t.startswith(".")
        self.rd = []
        self.wr = []
        self.srcC = []
        self.srcAB = []
        if self.label or not t:
            self.kind = "label"
            self.op = ""
            return
        sp = t.split(None, 1)
        op = sp[0]
        self.op = op
        rest = sp[1] if len(sp) > 1 else ""
        ops = [x.strip() for x in rest.split(",")]
        if ops:
            ops[-1] = ops[-1].split()[0] if ops[-1] else ""
        R = [regs_of(x) for x in ops]
        flat = lambda L: [r for x in L for r in x]
        if op.startswith("v_mfma"):
            self.kind = "mfma"
            self.wr = R[0]; self.srcAB = R[1] + R[2]; self.srcC = R[3]
            self.rd = self.srcAB + self.srcC
        elif op.startswith("ds_"):
            self.kind = "ds"
            if op.startswith("ds_write"):
                self.rd = flat(R)
            else:
                self.wr = R[0]; self.rd = flat(R[1:])
        elif op.startswith("buffer_"):
            self.kind = "vmem"
            if op.startswith("buffer_store"):
                self.rd = flat(R); self.sdata = R[0]
            elif re.search(r"\blds\b", rest):
                self.rd = flat(R) + ["m0"]; self.isdma = True
            else:
                self.wr = R[0]; self.rd = flat(R[1:])
        elif op.startswith("v_"):
            self.kind = "trans" if op.startswith(TRANS) else "valu"
            if op.startswith("v_permlane") and "swap" in op:
                self.wr = R[0] + R[1]; self.rd = R[0] + R[1]
            else:
                self.wr = R[0]; self.rd = flat(R[1:])
                if op.startswith(("v_fmac", "v_mac", "v_dot2c")): self.rd += R[0]
                if op.startswith("v_cndmask") and len(ops) == 3: self.rd += ["vcc"]
        elif op == "s_waitcnt":
            self.kind = "wait"
            m = re.search(r"vmcnt\((\d+)\)", rest); self.vm = int(m.group(1)) if m else None
            m = re.search(r"lgkmcnt\((\d+)\)", rest); self.lg = int(m.group(1)) if m else None
        elif op == "s_nop":
            self.kind = "nop"; self.n = int(rest)
        elif op == "s_barrier":
            self.kind = "barrier"
        elif op.startswith(("s_cbranch", "s_branch", "s_endpgm", "s_setprio")):
            self.kind = "branch"
            if "scc" in op: self.rd = ["scc"]
            if "vcc" in op: self.rd = ["vcc"]
        elif op.startswith(("s_load", "s_memtime", "s_memrealtime")):
            self.kind = "smem"; self.wr = R[0]; self.rd = flat(R[1:])
        elif op.startswith("s_"):
            self.kind = "salu"
            if op.startswith(("s_cmp", "s_bitcmp")):
                self.rd = flat(R); self.wr = ["scc"]
            else:
                self.wr = list(R[0]); self.rd = flat(R[1:])
                if op.startswith(("s_cselect", "s_addc", "s_subb", "s_cmov")): self.rd += ["scc"]
                if not op.startswith(("s_mov", "s_cselect", "s_mul_i32", "s_cmov", "s_ff1", "s_bitset", "s_mul_hi")): self.wr += ["scc"]
                if op.startswith("s_bitset"): self.rd += R[0]
        else:
            raise ValueError(text)

    def states(self):
        if self.kind == "label": return 0
        if self.kind == "nop": return self.n + 1
        return 1

def I(text, tag=None):
    return Ins(text, tag)

def check_hazards(trace, name=""):
    errs = []
    tr = [x for x in trace if x.kind != "label"]
    n = len(tr)
    for i, c in enumerate(tr):
        dist = 0
        j = i - 1
        isvalu = c.kind in ("valu", "trans")
        while j >= 0 and dist < 20:
            p = tr[j]
            need = 0
            pw = set(p.wr)
            pvalu = p.kind in ("valu", "trans")
            if pvalu and c.kind == "mfma" and pw & set(c.rd): need = max(need, 2)
            if p.kind == "mfma":
                if c.kind == "mfma":
                    if pw & set(c.srcAB): need = max(need, 8)
                    if pw & set(c.srcC) and p.wr != c.srcC: need = max(need, 6)
                    if pw & set(c.wr) and p.wr != c.srcC: need = max(need, 6)
                elif c.kind in ("valu", "trans", "ds", "vmem"):
                    if pw & (set(c.rd) | set(c.wr)): need = max(need, 8)
                    if isvalu and set(p.srcC) & set(c.wr): need = max(need, 3)
            if p.kind == "trans" and c.kind == "valu" and pw & set(c.rd): need = max(need, 1)
            if p.kind == "trans" and c.kind in ("ds", "vmem") and pw & set(c.rd): need = max(need, 1)
            if pvalu and c.op.startswith(("v_readfirstlane", "v_readlane")) and pw & set(c.rd): need = max(need, 1)
            if pvalu and (c.op.startswith("v_permlane") or "dpp" in c.text or "row_" in c.text) and pw & set(c.rd): need = max(need, 2)
            sw = {r for r in pw if r[0] == "s" or r == "vcc"}
            if pvalu and c.kind == "vmem" and sw & set(c.rd): need = max(need, 5)
            if pvalu and isvalu and sw & set(c.rd): need = max(need, 2)
            if pvalu and c.kind in ("salu", "branch") and sw & set(c.rd): need = max(need, 1)
            if p.kind == "salu" and "m0" in pw and c.kind == "vmem" and "m0" in c.rd: need = max(need, 1)
            if p.kind == "vmem" and hasattr(p, "sdata") and set(p.sdata) & set(c.wr): need = max(need, 2)
            if need > dist:
                errs.append(f"{name} hazard need {need} have {dist}: [{p.text}] -> [{c.text}]")
            dist += p.states()
            j -= 1
    return errs

def check_counters(trace, name=""):
    errs = []
    vmq = []; lgq = []
    pend = {}
    landed = {}
    readers = {}
    dmas = {}
    rds = {}
    for c in trace:
        if c.kind == "label": continue
        if c.kind == "wait":
            if c.vm is not None:
                while len(vmq) > c.vm:
                    x = vmq.pop(0)
                    for r in x[0].wr:
                        if pend.get(r) is x: del pend[r]
                    x[1]["st"] = "own"
            if c.lg is not None:
                assert c.lg <= 15
                while len(lgq) > c.lg:
                    x = lgq.pop(0)
                    for r in x[0].wr:
                        if pend.get(r) is x: del pend[r]
                    x[1]["st"] = "own"
            continue
        if c.kind == "barrier":
            for d in (dmas, rds):
                for s, L in d.items():
                    for e in L:
                        if e["st"] == "own": e["st"] = "all"
            continue
        for r in c.rd + c.wr:
            if r in pend and not (c.kind == "ds" and r in c.wr and pend[r][0].kind == "ds"):
                errs.append(f"{name} uncovered load: [{pend[r][0].text}] -> [{c.text}]")
        e = {"st": "fly", "ins": c}
        for tag in getattr(c, "rtags", []):
            kind, slot, content, shared = tag
            ok = ("all",) if shared else ("own", "all")
            if kind == "dma":
                for x in rds.get(slot, []):
                    if x["st"] not in ok:
                        errs.append(f"{name} WAR on {slot}: [{x['ins'].text}] -> [{c.text}]")
                rds[slot] = []
                L = [x for x in dmas.get(slot, []) if x["content"] == content]
                e["content"] = content
                dmas[slot] = L + [e]
            elif kind == "wr":
                for x in dmas.get(slot, []):
                    if x["st"] == "fly" and x["ins"].kind == "vmem":
                        errs.append(f"{name} WAW on {slot}: [{x['ins'].text}] -> [{c.text}]")
                L = [x for x in dmas.get(slot, []) if x["content"] == content]
                e["content"] = content
                dmas[slot] = L + [e]
            elif kind == "rd":
                L = dmas.get(slot, [])
                if content is not None:
                    if not L: errs.append(f"{name} read of never-filled {slot}: [{c.text}]")
                    for x in L:
                        if x["content"] != content:
                            errs.append(f"{name} wrong content in {slot}: want {content} have {x['content']} [{c.text}]")
                        elif x["ins"].kind == "vmem" and x["st"] not in ok:
                            errs.append(f"{name} RAW on {slot} {content}: [{x['ins'].text}] -> [{c.text}]")
                rds.setdefault(slot, []).append(e)
        if c.kind == "vmem":
            x = (c, e); vmq.append(x)
            if len(vmq) > 63: errs.append(f"{name} vmcnt overflow at [{c.text}]")
            for r in c.wr: pend[r] = x
        elif c.kind == "ds":
            x = (c, e); lgq.append(x)
            for r in c.wr: pend[r] = x
        elif c.kind == "smem":
            x = (c, e); lgq.append(x); lgq.append(x)
            for r in c.wr: pend[r] = x
    return errs

def issue_model(trace):
    t = 0; mf_free = 0; prev = None; after_m = 0
    for c in trace:
        if c.kind == "label": continue
        if c.kind == "mfma":
            t = max(t, mf_free); mf_free = t + 16; t += 4; after_m = 1
        else:
            scalar = c.kind in ("salu", "wait", "nop", "barrier", "branch", "smem")
            if after_m and not scalar: t += 4
            after_m = 0
            if c.kind in ("ds", "vmem") and prev is not None and prev.kind in ("valu", "trans"): t += 8
            t += 8 if c.kind == "trans" else 4 * c.states()
        prev = c
    return t
```

```python
import sys, math, struct, copy
from asmlib import *

KN = "standalone__gqa_softmax__near_ridge_kernel"
QHEAD = 188416; KHEAD = 131072
QBYTES = 512 * QHEAD; KBYTES = 512 * KHEAD; WSB = 385875968
CSCALE = struct.unpack("<I", struct.pack("<f", math.log2(math.e) / math.sqrt(128)))[0]
L_LO = 0x30800000; L_HI = 0x4E800000

def O(j, t): return 32 * j + 4 * t
def S(b, s): return 192 + 8 * b + 4 * s
def P(b): return 208 + 4 * b
STG = 216
vKr, vQr, vV0, vV1, vSkv, vSq0, vSq2, vOr, vOg = 224, 225, 226, 227, 228, 229, 230, 231, 232
vOw = [233, 234, 235, 236]
vT0, vT1 = 238, 240
vL = 242
vLane, vStamp = 248, 249
vX = 250
def aQ(j, ks): return 16 * j + 4 * ks
def aK(b, s, ks): return 96 + 32 * b + 16 * s + 4 * ks
def aV(b, t): return 160 + 32 * b + 4 * t
def aL(j): return 224 + 4 * j
aONE = 248
sQ, sK, sV, sO, sW = 16, 20, 24, 28, 32
sC, sKoff, sVoff, sM0K, sM0V, sQoff, sOoff, sQm0, sB, sPass, sFail, sBit, sT0, sT1, sQO, sRow0, sWave, sKVb = range(36, 54)
sT2, sT3, sT4, sStI = 54, 55, 56, 57
QO0 = 65536
def v4(r): return f"v[{r}:{r+3}]"
def a4(r): return f"a[{r}:{r+3}]"
def v2(r): return f"v[{r}:{r+1}]"
def a2(r): return f"a[{r}:{r+1}]"
MF = "v_mfma_f32_16x16x32_bf16"

class Cfg:
    def __init__(self, **kw):
        self.qpol = "nt"; self.kvpol = ""; self.opol = "nt"
        self.stamps = False; self.pkmul = True
        self.nomul = False; self.nobar = False
        self.__dict__.update(kw)

class Step:
    def __init__(self, n):
        self.m = []
        self.sc = [[] for _ in range(n)]
        self.pre = [[] for _ in range(n)]
        self.vec = [[] for _ in range(n)]
        self.post = [[] for _ in range(n)]
    def emit(self):
        out = []
        for i, m in enumerate(self.m):
            out.append(m); out += self.sc[i]; out += self.pre[i]; out += self.vec[i]; out += self.post[i]
        return out

def T(ins, fn):
    ins.tagfn = fn
    return ins

class Gen:
    def __init__(self, cfg):
        self.c = cfg
        self.uid = 0

    def kread(self, buf, slot, s, ks, rel=1):
        return T(I(f"ds_read_b128 {a4(aK(buf, s, ks))}, v{vKr} offset:{slot*16384 + s*4096 + ks*256}"),
                 lambda x: ("rd", ("K", slot), x["it"] + rel, True))
    def vread(self, buf, slot, t, h, rel=1):
        return T(I(f"ds_read_b64_tr_b16 {a2(aV(buf, t) + 2*h)}, v{vV1 if t & 1 else vV0} offset:{slot*16384 + 8192 + h*4096 + (t >> 1)*256}"),
                 lambda x: ("rd", ("V", slot), x["it"] + rel, True))
    def kdma(self, slot, n, rel=4):
        return T(I(f"buffer_load_dwordx4 v{vSkv}, s[{sK}:{sK+3}], s{sKoff} offen offset:{1024*n} {self.c.kvpol} lds"),
                 lambda x: ("dma", ("K", slot), x["it"] + rel, True))
    def vdma(self, slot, n, rel=4):
        return T(I(f"buffer_load_dwordx4 v{vSkv}, s[{sV}:{sV+3}], s{sVoff} offen offset:{2048*n} {self.c.kvpol} lds"),
                 lambda x: ("dma", ("V", slot), x["it"] + rel, True))
    def qread(self, j, ks):
        return T(I(f"ds_read_b128 {a4(aQ(j, ks))}, v{vQr} offset:{j*4096 + ks*256}"),
                 lambda x: [("rd", ("QO", 4*j + c), ("Q", x["qp"]), False) for c in range(4)])

    def softmax_first(self, st, b):
        x = [S(b, 0) + i for i in range(8)]
        mul = lambda r: [] if self.c.nomul else [I(f"v_mul_f32 v{r}, s{sC}, v{r}")]
        ex = lambda r: [I(f"v_exp_f32 v{r}, v{r}")]
        cv = lambda k: [I(f"v_cvt_pk_bf16_f32 v{P(b)+k}, v{x[2*k]}, v{x[2*k+1]}")]
        st.vec[8] += mul(x[0]) + mul(x[1]); st.vec[9] += ex(x[0])
        st.vec[10] += mul(x[2]) + mul(x[3]); st.vec[11] += ex(x[1])
        st.vec[13] += ex(x[2]); st.vec[14] += cv(0) + mul(x[4]); st.vec[15] += ex(x[3])
        st.vec[16] += mul(x[5]) + mul(x[6])
    def softmax_second(self, st, b):
        x = [S(b, 0) + i for i in range(8)]
        mul = lambda r: [] if self.c.nomul else [I(f"v_mul_f32 v{r}, s{sC}, v{r}")]
        ex = lambda r: [I(f"v_exp_f32 v{r}, v{r}")]
        cv = lambda k: [I(f"v_cvt_pk_bf16_f32 v{P(b)+k}, v{x[2*k]}, v{x[2*k+1]}")]
        st.vec[0] += ex(x[4]); st.vec[1] += cv(1) + mul(x[7]); st.vec[2] += ex(x[5]); st.vec[3] += ex(x[6])
        st.vec[5] += ex(x[7]); st.vec[6] += cv(2) + cv(3)
    def qk(self, j, kb, b):
        out = []
        for s in range(2):
            for ks in range(4):
                c = "0" if ks == 0 else v4(S(b, s))
                out.append(I(f"{MF} {v4(S(b, s))}, {a4(aK(kb, s, ks))}, {a4(aQ(j, ks))}, {c}"))
        return out
    def pv(self, j, vb, b, first):
        out = []
        for t in range(8):
            c = "0" if first else v4(O(j, t))
            out.append(I(f"{MF} {v4(O(j, t))}, {a4(aV(vb, t))}, {v4(P(b))}, {c}"))
        c = "0" if first else a4(aL(j))
        out.append(I(f"{MF} {a4(aL(j))}, {a4(aONE)}, {v4(P(b))}, {c}"))
        return out
    def scale_pack_write(self, jreg, jslot, tagp):
        o = []
        for t in range(8):
            r = O(jreg, t)
            if self.c.pkmul:
                o.append(I(f"v_pk_mul_f32 {v2(r)}, {v2(r)}, {v2(vT1)} op_sel_hi:[1,0]"))
                o.append(I(f"v_pk_mul_f32 {v2(r+2)}, {v2(r+2)}, {v2(vT1)} op_sel_hi:[1,0]"))
            else:
                for k in range(4): o.append(I(f"v_mul_f32 v{r+k}, v{vT1}, v{r+k}"))
        for t in range(8):
            r = O(jreg, t)
            o.append(I(f"v_cvt_pk_bf16_f32 v{r}, v{r}, v{r+1}"))
            o.append(I(f"v_cvt_pk_bf16_f32 v{r+1}, v{r+2}, v{r+3}"))
        for t in range(8):
            r = O(jreg, t)
            w = I(f"ds_write_b64 v{vOw[t & 3]}, {v2(r)} offset:{jslot*4096 + (t >> 2)*1024}")
            if tagp: T(w, lambda x, t=t: [("wr", ("QO", 4*jslot + c), ("O", x["op"]), False) for c in ((t >> 2), 2 + (t >> 2))])
            o.append(w)
        return o
    def epilogue(self, j):
        o = [I(f"v_accvgpr_read_b32 v{vT0}, a{aL(j)}"),
             I(f"v_rcp_f32 v{vT1}, v{vT0}"),
             I(f"v_add_u32 v{vT0}, {hex((-L_LO) & 0xffffffff)}, v{vT0}"),
             I(f"v_cmp_le_u32 vcc, {hex(L_HI - L_LO)}, v{vT0}")]
        o += self.scale_pack_write(j, j, True)
        o += [I(f"s_cmp_lg_u64 vcc, 0"), I(f"s_cselect_b32 s{sT0}, s{sBit}, 0"),
              I(f"s_or_b32 s{sFail}, s{sFail}, s{sT0}"), I(f"s_lshl_b32 s{sBit}, s{sBit}, 1")]
        return o
    def stamp_issue(self):
        return [I("s_memrealtime s[60:61]"), I("s_memtime s[62:63]")]
    def stamp_save(self):
        o = []
        for k in range(4):
            o += [I(f"s_mov_b32 m0, s{sStI}"), I(f"s_add_u32 s{sStI}, s{sStI}, 1"), I(f"v_writelane_b32 v{vStamp}, s{60+k}, m0")]
        return o

    def iteration(self, NB, i, kind, tag):
        c = self.c
        steps = []
        kb = i & 1; rs = (i + 1) & 3; ds_ = i & 3; nb = (i + 1) & 1
        for j in range(NB):
            g = NB * i + j
            b = g & 1; pb = b ^ 1
            st = Step(17)
            pj = (j - 1) % NB
            vb = (i - 1) & 1 if j == 0 else i & 1
            first = (kind == "0" and j >= 1) or (kind == "1" and j == 0)
            st.m = self.qk(j, kb, b) + self.pv(pj, vb, pb, first)
            self.softmax_second(st, pb)
            self.softmax_first(st, b)
            steps.append(st)
        kr = [self.kread(nb, rs, s, ks) for s in range(2) for ks in range(4)]
        vr = [self.vread(nb, rs, t, h) for t in range(8) for h in range(2)]
        kg = [(0, 4), (0, 12), (1, 4), (1, 12)]
        if NB == 6: vg = [(j, g) for j in range(2, 6) for g in (4, 12)]
        else: vg = [(2, 4), (2, 8), (2, 12), (3, 4), (3, 8), (3, 12), (4, 4), (4, 12)]
        for n, (j, g) in enumerate(kg): steps[j].pre[g] += kr[2*n:2*n+2]
        for n, (j, g) in enumerate(vg): steps[j].pre[g] += vr[2*n:2*n+2]
        N = {"B": 20, "14": 20, "15": 16, "0": 8, "1": 8}[kind]
        s0 = steps[0]
        if c.stamps and kind == "0": s0.sc[0] += self.stamp_issue()
        pos = (i - 2) & 3
        if kind == "B" and pos < 3:
            lab = f"L_w{tag}_{i}"
            s0.sc[0].append(I(f"s_cmp_lg_u32 s{sB}, 0"))
            s0.sc[1].append(I(f"s_cbranch_scc1 {lab}"))
            w = I(f"s_waitcnt vmcnt({8 + 4*pos})"); w.cond = "b0"
            s0.sc[1] += [w, I(f"{lab}:")]
        s0.sc[2].append(I(f"s_waitcnt vmcnt({N}) lgkmcnt(0)"))
        if not c.nobar: s0.sc[3].append(I("s_barrier"))
        if c.stamps and kind == "0": s0.post[3] += self.stamp_save()
        steps[NB-1].sc[14].append(I("s_waitcnt lgkmcnt(4)"))
        s0.sc[6].append(I(f"s_add_u32 m0, s{sM0K}, {ds_*16384}"))
        s0.pre[7] += [self.kdma(ds_, 0), self.kdma(ds_, 1)]
        s0.sc[8].append(I(f"s_add_u32 s{sKoff}, s{sKoff}, 8192"))
        s1 = steps[1]
        s1.sc[6].append(I(f"s_add_u32 m0, s{sM0V}, {ds_*16384}"))
        s1.pre[7] += [self.vdma(ds_, 0), self.vdma(ds_, 1)]
        s1.sc[8].append(I(f"s_add_u32 s{sVoff}, s{sVoff}, 8192"))
        if kind == "B":
            for n in range(2):
                steps[2].pre[7].append(T(I(f"ds_read_b128 {v4(STG + 4*n)}, v{vOr} offset:{pos*2048 + n*1024}"),
                    lambda x, n=n: ("rd", ("QO", 8*x["b"] + 2*pos + n), ("O", x["p"] - 1) if x["p"] > 0 and 8*x["b"] + 2*pos + n < 4*NB else None, False)))
                steps[3].pre[7].append(I(f"buffer_store_dwordx4 {v4(STG + 4*n)}, v{vOg}, s[{sO}:{sO+3}], s{sOoff} offen offset:{128*n} {c.opol}"))
                steps[4].pre[7].append(T(I(f"buffer_load_dwordx4 v{vSq2 if pos & 1 else vSq0}, s[{sQ}:{sQ+3}], s{sQoff} offen offset:{1024*n} {c.qpol} lds"),
                    lambda x, n=n: ("dma", ("QO", 8*x["b"] + 2*pos + n), ("Q", x["p"] + 1), False)))
            steps[3].sc[7].append(I(f"s_waitcnt lgkmcnt({4 if NB == 6 else 6})"))
            steps[3].sc[8].append(I(f"s_add_u32 s{sOoff}, s{sOoff}, 2048"))
            steps[4].sc[6].append(I(f"s_mov_b32 m0, s{sQm0}"))
            steps[4].sc[8].append(I(f"s_add_u32 s{sQoff}, s{sQoff}, 2048"))
            steps[4].sc[9].append(I(f"s_add_u32 s{sQm0}, s{sQm0}, 2048"))
            if pos == 3:
                steps[NB-1].vec[7].append(I(f"v_add_u32 v{vOr}, 0x2000, v{vOr}"))
                steps[NB-1].sc[13].append(I(f"s_add_u32 s{sB}, s{sB}, 1"))
                steps[NB-1].sc[15].append(I(f"s_cmp_lt_u32 s{sB}, 3"))
        if kind == "15":
            for j in range(NB):
                if j == NB - 1: steps[j].sc[7].append(I("s_waitcnt vmcnt(8)"))
                steps[j].pre[7] += [self.qread(j, 0), self.qread(j, 1)]
                steps[j].pre[8] += [self.qread(j, 2), self.qread(j, 3)]
            for j in range(NB - 2):
                steps[j+2].post[7] += self.epilogue(j)
            steps[NB-1].sc[14] = [I("s_waitcnt lgkmcnt(6)")]
            steps[NB-1].sc[13].append(I(f"s_add_u32 s{sPass}, s{sPass}, 1"))
            steps[NB-1].sc[15].append(I(f"s_cmp_eq_u32 s{sPass}, 4"))
        if kind == "0":
            for n, j in enumerate((NB - 2, NB - 1)):
                lab = f"L_e{tag}_{n}"
                steps[n].post[7] += [I(f"s_cmp_eq_u32 s{sPass}, 0"), I(f"s_cbranch_scc1 {lab}")]
                ep = self.epilogue(j)
                for x in ep: x.cond = "p>0"
                steps[n].post[7] += ep + [I(f"{lab}:")]
        if kind == "1":
            sc = [f"s_mul_i32 s{sT1}, s{sPass}, {QHEAD}",
                  f"s_add_u32 s{sT1}, s{sT1}, s{sRow0}",
                  f"s_add_u32 s{sQoff}, s{sT1}, {QHEAD}",
                  f"s_sub_u32 s{sOoff}, s{sT1}, {QHEAD}",
                  f"s_add_u32 s{sT2}, s{sQoff}, {NB*4096}",
                  f"s_add_u32 s{sT3}, s{sOoff}, {NB*4096}",
                  f"s_cmp_lt_u32 s{sPass}, 3",
                  f"s_cselect_b32 s{sQ+2}, s{sT2}, 0",
                  f"s_cmp_gt_u32 s{sPass}, 0",
                  f"s_cselect_b32 s{sO+2}, s{sT3}, 0",
                  f"s_cselect_b32 s{sOoff}, s{sOoff}, 0",
                  f"s_mov_b32 s{sQm0}, s{sQO}",
                  f"s_mov_b32 s{sB}, 0"]
            for n, x in enumerate(sc): steps[2].sc[n].append(I(x))
            steps[2].vec[7].append(I(f"v_add_u32 v{vOr}, {hex((-24576) & 0xffffffff)}, v{vOr}"))
        for st in steps:
            if not (st.sc[7] or st.pre[7] or st.vec[7] or st.post[7]): st.sc[7].append(I("s_nop 0"))
        out = []
        for st in steps: out += st.emit()
        return out

    def prologue_common(self):
        c = self.c
        L = vLane; x = vX
        t = f"""
s_cmp_ge_u32 s2, 256
s_cbranch_scc1 L_end
s_load_dwordx4 s[4:7], s[0:1], 0
s_load_dwordx4 s[8:11], s[0:1], 16
s_load_dwordx4 s[12:15], s[0:1], 32
v_lshrrev_b32 v{x}, 6, v0
v_and_b32 v{L}, 63, v0
v_readfirstlane_b32 s{sWave}, v{x}
s_and_b32 s{sT0}, s2, 7
s_lshr_b32 s{sT1}, s2, 4
s_lshl_b32 s{sT1}, s{sT1}, 3
s_add_u32 s{sT0}, s{sT0}, s{sT1}
s_lshl_b32 s{sKVb}, s{sT0}, 19
s_mul_i32 s{sRow0}, s{sT0}, {4*QHEAD}
s_bfe_u32 s{sT1}, s2, 0x10003
s_mul_i32 s{sT1}, s{sT1}, {368*256}
s_add_u32 s{sRow0}, s{sRow0}, s{sT1}
s_mul_i32 s{sT1}, s{sWave}, 24576
s_add_u32 s{sRow0}, s{sRow0}, s{sT1}
s_add_u32 s{sQO}, s{sT1}, {QO0}
s_and_b32 s{sT0}, s{sWave}, 1
s_lshl_b32 s{sT0}, s{sT0}, 12
s_lshr_b32 s{sT1}, s{sWave}, 1
s_lshl_b32 s{sT2}, s{sT1}, 11
s_add_u32 s{sM0K}, s{sT0}, s{sT2}
s_lshl_b32 s{sT2}, s{sT1}, 10
s_add_u32 s{sM0V}, s{sT0}, s{sT2}
s_add_u32 s{sKoff}, s{sKVb}, s{sM0K}
s_add_u32 s{sVoff}, s{sKVb}, s{sM0V}
s_add_u32 s{sM0V}, s{sM0V}, 8192
s_lshl_b32 s{sT1}, s{sT1}, 5
v_bfe_u32 v{x}, v{L}, 2, 2
v_lshrrev_b32 v{x+1}, 4, v{L}
v_and_b32 v{x+2}, 3, v{L}
v_lshlrev_b32 v{vSq0}, 8, v{x}
v_lshl_add_u32 v{vSq0}, v{x+1}, 6, v{vSq0}
v_lshl_add_u32 v{vSq0}, v{x+2}, 4, v{vSq0}
v_xor_b32 v{vSq2}, 32, v{vSq0}
v_xor_b32 v{vSkv}, s{sT1}, v{vSq0}
s_waitcnt lgkmcnt(0)
s_mov_b32 s{sQ}, s4
s_and_b32 s{sQ+1}, s5, 0xffff
s_mov_b32 s{sQ+2}, {QBYTES}
s_mov_b32 s{sQ+3}, 0x20000
s_mov_b32 s{sK}, s6
s_and_b32 s{sK+1}, s7, 0xffff
s_add_u32 s{sK+2}, s{sKVb}, {4*KHEAD}
s_mov_b32 s{sK+3}, 0x20000
s_mov_b32 s{sV}, s8
s_and_b32 s{sV+1}, s9, 0xffff
s_add_u32 s{sV+2}, s{sKVb}, {4*KHEAD}
s_mov_b32 s{sV+3}, 0x20000
s_mov_b32 s{sO}, s10
s_and_b32 s{sO+1}, s11, 0xffff
s_mov_b32 s{sO+2}, {QBYTES}
s_mov_b32 s{sO+3}, 0x20000
"""
        if c.stamps:
            t += f"""s_mov_b32 s{sW}, s14
s_and_b32 s{sW+1}, s15, 0xffff
s_mov_b32 s{sW+2}, {WSB}
s_mov_b32 s{sW+3}, 0x20000
s_mov_b32 s{sStI}, 0
v_mov_b32 v{vStamp}, 0
"""
        o = [I(l) for l in t.strip().split("\n")]
        if c.stamps: o += self.stamp_issue() + [I("s_waitcnt lgkmcnt(0)")] + self.stamp_save()
        o += [I(f"s_cmp_eq_u32 s{sWave}, 3"), I("s_cbranch_scc1 L_pro5")]
        return o

    def addr_setup(self):
        L = vLane; x = vX
        t = f"""
v_and_b32 v{x+3}, 2, v{x}
v_xor_b32 v{x+3}, v{x+3}, v{x+1}
v_lshlrev_b32 v{vKr}, 10, v{x}
v_lshl_add_u32 v{vKr}, v{x+2}, 6, v{vKr}
v_lshl_add_u32 v{vKr}, v{x+3}, 4, v{vKr}
v_add_u32 v{vQr}, s{sQO}, v{vKr}
v_and_b32 v{x+3}, 1, v{x+1}
v_lshlrev_b32 v{vV0}, 10, v{x+1}
v_lshl_add_u32 v{vV0}, v{x}, 6, v{vV0}
v_lshl_add_u32 v{vV0}, v{x+3}, 5, v{vV0}
v_lshl_add_u32 v{vV0}, v{x+2}, 3, v{vV0}
v_xor_b32 v{vV1}, 32, v{vV0}
s_add_u32 s{sT0}, s{sQO}, 24576
v_lshl_add_u32 v{vOr}, v{L}, 4, s{sT0}
v_lshrrev_b32 v{x}, 3, v{L}
v_and_b32 v{x+2}, 7, v{L}
v_xor_b32 v{x+4}, v{x}, v{x+2}
v_lshlrev_b32 v{vOg}, 8, v{x}
v_lshl_add_u32 v{vOg}, v{x+4}, 4, v{vOg}
v_and_b32 v{x}, 1, v{x}
v_lshrrev_b32 v{x+4}, 5, v{L}
v_xor_b32 v{x+4}, v{x+4}, v{x+2}
v_lshl_add_u32 v{vOw[0]}, v{x}, 11, s{sQO}
v_lshl_add_u32 v{vOw[0]}, v{x+2}, 7, v{vOw[0]}
v_lshl_add_u32 v{vOw[0]}, v{x+4}, 4, v{vOw[0]}
v_lshl_add_u32 v{vOw[0]}, v{x+3}, 3, v{vOw[0]}
v_xor_b32 v{vOw[1]}, 32, v{vOw[0]}
v_xor_b32 v{vOw[2]}, 64, v{vOw[0]}
v_xor_b32 v{vOw[3]}, 0x60, v{vOw[0]}
v_mov_b32 v{x}, 0x3f803f80
v_accvgpr_write_b32 a{aONE}, v{x}
v_accvgpr_write_b32 a{aONE+1}, v{x}
v_accvgpr_write_b32 a{aONE+2}, v{x}
v_accvgpr_write_b32 a{aONE+3}, v{x}
s_mov_b32 s{sC}, {hex(CSCALE)}
s_mov_b32 s{sPass}, 0
s_mov_b32 s{sFail}, 0
s_mov_b32 s{sBit}, 1
"""
        return [I(l) for l in t.strip().split("\n")]

    def prologue(self, NB, tag):
        c = self.c
        o = [I(f"L_pro{tag}:")]
        def kv(tile, which):
            r = []
            if "k" in which:
                r += [I(f"s_add_u32 m0, s{sM0K}, {tile*16384}"), I("s_nop 0"), self.kdma(tile, 0, tile), self.kdma(tile, 1, tile),
                      I(f"s_add_u32 s{sKoff}, s{sKoff}, 8192")]
            if "v" in which:
                r += [I(f"s_add_u32 m0, s{sM0V}, {tile*16384}"), I("s_nop 0"), self.vdma(tile, 0, tile), self.vdma(tile, 1, tile),
                      I(f"s_add_u32 s{sVoff}, s{sVoff}, 8192")]
            return r
        o += kv(0, "k")
        o += [I(f"s_mov_b32 s{sQoff}, s{sRow0}")]
        for j in range(NB):
            o += [I(f"s_add_u32 m0, s{sQO}, {j*4096}"), I("s_nop 0")]
            for n in range(4):
                o.append(T(I(f"buffer_load_dwordx4 v{vSq2 if n & 2 else vSq0}, s[{sQ}:{sQ+3}], s{sQoff} offen offset:{1024*n} {c.qpol} lds"),
                           lambda x, j=j, n=n: ("dma", ("QO", 4*j + n), ("Q", 0), False)))
            o += [I(f"s_add_u32 s{sQoff}, s{sQoff}, 4096")]
        o += kv(0, "v") + kv(1, "kv") + kv(2, "kv") + kv(3, "kv")
        o += self.addr_setup()
        o += [I("s_waitcnt vmcnt(12)"), I("s_barrier")]
        o += [self.kread(0, 0, s, ks, 0) for s in range(2) for ks in range(4)]
        o += [self.qread(j, ks) for j in range(NB) for ks in range(4)]
        o += [self.vread(0, 0, t, h, 0) for t in range(8) for h in range(2)]
        o += [I("s_waitcnt lgkmcnt(0)"), I(f"s_branch L_it0_{tag}")]
        return o

    def final(self, NB, tag):
        c = self.c
        o = [I(f"L_fin{tag}:")]
        if c.stamps: o += self.stamp_issue() + [I("s_waitcnt lgkmcnt(0)")] + self.stamp_save()
        b = (NB * 16 - 1) & 1
        o += [I(f"s_add_u32 s{sOoff}, s{sRow0}, {3*QHEAD}"), I(f"s_mov_b32 s{sO+2}, {QBYTES}"),
              I(f"v_add_u32 v{vOr}, {hex((-24576) & 0xffffffff)}, v{vOr}")]
        def rd(u, r):
            return T(I(f"ds_read_b128 {a4(r)}, v{vOr} offset:{u*1024}"), lambda x, u=u: ("rd", ("QO", u), ("O", 3), False))
        def stb(j, r0):
            r = []
            for n in range(4):
                r.append(I(f"buffer_store_dwordx4 {a4(r0 + 4*n)}, v{vOg}, s[{sO}:{sO+3}], s{sOoff} offen offset:{(n >> 1)*2048 + (n & 1)*128} {c.opol}"))
            r.append(I(f"s_add_u32 s{sOoff}, s{sOoff}, 4096"))
            return r
        for u in range(4 * (NB - 2)): o.append(rd(u, 4 * u))
        st = Step(17)
        self.softmax_second(st, b)
        for g in range(7):
            o += st.vec[g] + [I("s_nop 0")]
        o += [I("s_nop 0")]
        o += self.pv(NB - 1, 1, b, False)
        o += [I("s_waitcnt lgkmcnt(0)")]
        for j in range(NB - 2): o += stb(j, 16 * j)
        for j in (NB - 2, NB - 1):
            o += self.epilogue(j)
            for n in range(4): o.append(rd(4*j + n, 16*j + 4*n))
            o += [I("s_waitcnt lgkmcnt(0)")]
            o += stb(j, 16 * j)
        o += [I(f"s_mov_b32 s{sT4}, {NB}"), I("s_branch L_tail")]
        return o

    def fallback(self):
        c = self.c
        m, l, al, mx, pa, pb_ = vX, vX + 1, vX + 2, vX + 3, vX + 4, vX + 5
        fK, fV0, fV1 = STG, STG + 1, STG + 2
        sP, sJ, sTile, sKo = sB, sPass, sT2, sT3
        x = [S(0, 0) + i for i in range(8)]
        o = []
        A = lambda s: o.extend(I(l) for l in s.strip().split("\n"))
        A(f"""
L_tail:
s_cmp_eq_u32 s{sFail}, 0
s_cbranch_scc1 L_done
s_waitcnt vmcnt(0) lgkmcnt(0)
s_mov_b32 s{sQ+2}, {QBYTES}
s_add_u32 s{sT0}, s{sQO}, 4096
v_add_u32 v{fK}, s{sT0}, v{vKr}
v_add_u32 v{fV0}, s{sT0}, v{vV0}
v_add_u32 v{fV1}, s{sT0}, v{vV1}
v_xor_b32 v{pa}, 16, v{vLane}
v_xor_b32 v{pb_}, 32, v{vLane}
v_lshlrev_b32 v{pa}, 2, v{pa}
v_lshlrev_b32 v{pb_}, 2, v{pb_}
s_mov_b32 s{sP}, 0
s_mov_b32 s{sJ}, 0
L_fb_scan:
s_bitcmp1_b32 s{sFail}, 0
s_cbranch_scc0 L_fb_next
s_mul_i32 s{sQoff}, s{sP}, {QHEAD}
s_add_u32 s{sQoff}, s{sQoff}, s{sRow0}
s_lshl_b32 s{sT0}, s{sJ}, 12
s_add_u32 s{sQoff}, s{sQoff}, s{sT0}
s_lshl_b32 s{sKo}, s{sP}, 17
s_add_u32 s{sKo}, s{sKo}, s{sKVb}
s_mov_b32 m0, s{sQO}
s_nop 0
""")
        for n in range(4):
            A(f"buffer_load_dwordx4 v{vSq2 if n & 2 else vSq0}, s[{sQ}:{sQ+3}], s{sQoff} offen offset:{1024*n} lds")
        A(f"v_mov_b32 v{m}, 0xff800000\nv_mov_b32 v{l}, 0")
        for r in range(32): A(f"v_mov_b32 v{r}, 0")
        A("s_waitcnt vmcnt(0)")
        for ks in range(4): A(f"ds_read_b128 {a4(aQ(0, ks))}, v{vQr} offset:{ks*256}")
        A(f"s_mov_b32 s{sTile}, 0\nL_fb_tile:")
        for half in range(2):
            A(f"s_add_u32 m0, s{sQO}, {4096 + half*4096}\ns_add_u32 s{sT0}, s{sKo}, {half*4096}")
            for n in range(4):
                A(f"buffer_load_dwordx4 v{vSq2 if n & 2 else vSq0}, s[{sK}:{sK+3}], s{sT0} offen offset:{1024*n} lds")
            A(f"s_add_u32 m0, s{sQO}, {4096 + 8192 + half*4096}\ns_nop 0")
            for n in range(4):
                A(f"buffer_load_dwordx4 v{vSq2 if n & 1 else vSq0}, s[{sV}:{sV+3}], s{sT0} offen offset:{1024*n} lds")
        A(f"s_add_u32 s{sKo}, s{sKo}, 8192\ns_waitcnt vmcnt(0)")
        for s in range(2):
            for ks in range(4): A(f"ds_read_b128 {a4(aK(0, s, ks))}, v{fK} offset:{s*4096 + ks*256}")
        for t in range(8):
            for h in range(2):
                A(f"ds_read_b64_tr_b16 {a2(aV(0, t) + 2*h)}, v{fV1 if t & 1 else fV0} offset:{8192 + h*4096 + (t >> 1)*256}")
        A("s_waitcnt lgkmcnt(0)")
        o += self.qk(0, 0, 0)
        A(f"""s_nop 7
s_nop 1
v_max3_f32 v{mx}, v{x[0]}, v{x[1]}, v{x[2]}
v_max3_f32 v{mx}, v{mx}, v{x[3]}, v{x[4]}
v_max3_f32 v{mx}, v{mx}, v{x[5]}, v{x[6]}
v_max3_f32 v{mx}, v{mx}, v{x[7]}, v{m}
ds_bpermute_b32 v{al}, v{pa}, v{mx}
s_waitcnt lgkmcnt(0)
v_max_f32 v{mx}, v{mx}, v{al}
ds_bpermute_b32 v{al}, v{pb_}, v{mx}
s_waitcnt lgkmcnt(0)
v_max_f32 v{mx}, v{mx}, v{al}
v_sub_f32 v{al}, v{m}, v{mx}
v_mul_f32 v{al}, s{sC}, v{al}
v_exp_f32 v{al}, v{al}
v_mov_b32 v{m}, v{mx}""")
        for r in x: A(f"v_sub_f32 v{r}, v{r}, v{mx}")
        for r in x: A(f"v_mul_f32 v{r}, s{sC}, v{r}")
        for r in x: A(f"v_exp_f32 v{r}, v{r}")
        A(f"v_mul_f32 v{l}, v{l}, v{al}")
        for r in range(32): A(f"v_mul_f32 v{r}, v{al}, v{r}")
        for r in x: A(f"v_add_f32 v{l}, v{l}, v{r}")
        for k in range(4): A(f"v_cvt_pk_bf16_f32 v{P(0)+k}, v{x[2*k]}, v{x[2*k+1]}")
        A("s_nop 1")
        o += self.pv(0, 0, 0, False)[:8]
        A(f"""s_add_u32 s{sTile}, s{sTile}, 1
s_cmp_lt_u32 s{sTile}, 16
s_nop 7
s_cbranch_scc1 L_fb_tile
ds_bpermute_b32 v{al}, v{pa}, v{l}
s_waitcnt lgkmcnt(0)
v_add_f32 v{l}, v{l}, v{al}
ds_bpermute_b32 v{al}, v{pb_}, v{l}
s_waitcnt lgkmcnt(0)
v_add_f32 v{l}, v{l}, v{al}
v_rcp_f32 v{vT1}, v{l}
s_nop 1""")
        o += self.scale_pack_write(0, 0, False)
        for n in range(4): A(f"ds_read_b128 {a4(16 + 4*n)}, v{vOr} offset:{n*1024}")
        A("s_waitcnt lgkmcnt(0)")
        for n in range(4):
            A(f"buffer_store_dwordx4 {a4(16 + 4*n)}, v{vOg}, s[{sO}:{sO+3}], s{sQoff} offen offset:{(n >> 1)*2048 + (n & 1)*128}")
        A(f"""s_waitcnt vmcnt(0)
L_fb_next:
s_add_u32 s{sJ}, s{sJ}, 1
s_cmp_eq_u32 s{sJ}, s{sT4}
s_cselect_b32 s{sJ}, 0, s{sJ}
s_addc_u32 s{sP}, s{sP}, 0
s_lshr_b32 s{sFail}, s{sFail}, 1
s_cbranch_scc1 L_fb_scan
L_done:""")
        if c.stamps:
            A("s_waitcnt vmcnt(0)")
            o += self.stamp_issue() + [I("s_waitcnt lgkmcnt(0)")] + self.stamp_save()
            A(f"""s_cmp_lg_u32 s{sWave}, 0
s_cbranch_scc1 L_end
s_mul_i32 s{sT0}, s2, {7*16}
v_lshlrev_b32 v{vX}, 2, v{vLane}
v_cmp_gt_u32 vcc, 28, v{vLane}
s_nop 1
s_and_b64 exec, exec, vcc
buffer_store_dword v{vStamp}, v{vX}, s[{sW}:{sW+3}], s{sT0} offen""")
        A("L_end:")
        return o

    def build(self):
        seg = {}
        text = []
        seg["pc"] = self.prologue_common()
        text += seg["pc"]
        errs = []
        for NB in (6, 5):
            tag = str(NB)
            pro = self.prologue(NB, tag)
            it14 = [I(".p2align 6"), I(f"L_A{tag}:")] + self.iteration(NB, 14, "14", tag)
            it15 = self.iteration(NB, 15, "15", tag) + [I(f"s_cbranch_scc1 L_fin{tag}")]
            it0 = [I(f"L_it0_{tag}:")] + self.iteration(NB, 0, "0", tag)
            it1 = self.iteration(NB, 1, "1", tag)
            B = [self.iteration(NB, 2 + k, "B", tag) for k in range(4)]
            B[0] = [I(f"L_B{tag}:")] + B[0]
            B[3] = B[3] + [I(f"s_cbranch_scc1 L_B{tag}")]
            back = [I(f"s_branch L_A{tag}")]
            fin = self.final(NB, tag)
            text += pro + it14 + it15 + it0 + it1 + B[0] + B[1] + B[2] + B[3] + back + fin
            tr = []
            def add(L, **ctx):
                for x in L:
                    cond = getattr(x, "cond", None)
                    if cond == "b0" and ctx.get("b") != 0: continue
                    if cond == "p>0" and ctx.get("p") == 0: continue
                    f = getattr(x, "tagfn", None)
                    if f is None:
                        tr.append(x); continue
                    tg = f(ctx)
                    if not isinstance(tg, list): tg = [tg]
                    y = copy.copy(x); y.rtags = tg
                    tr.append(y)
            add(seg["pc"]); add(pro, it=0, qp=0)
            cyc = {}
            for p in range(4):
                add(it0, it=16*p, p=p, op=p-1); add(it1, it=16*p+1, p=p)
                for b in range(3):
                    for k in range(4): add(B[k], it=16*p + 2 + 4*b + k, p=p, b=b)
                add(back)
                add(it14, it=16*p+14, p=p); add(it15, it=16*p+15, p=p, qp=p+1, op=p)
            add(fin, op=3)
            real = tr
            errs += check_hazards(real, tag)
            errs += check_counters(tr, tag)
            print(f"NB={NB}: model cycles it14 {issue_model(it14)} it15 {issue_model(it15)} it0 {issue_model(it0)} it1 {issue_model(it1)} B {[issue_model(x) for x in B]} total {issue_model(real)}", file=sys.stderr)
        fb = self.fallback()
        errs += check_hazards(fb + fb, "fb") + check_counters(fb + fb, "fb")
        text += fb
        seen = set()
        for e in errs:
            if e not in seen and len(seen) < 8: print("ERR", e, file=sys.stderr)
            seen.add(e)
        return text, errs

HDR = open("standalone__gqa_softmax__near_ridge.s.ref").read().split("; @launch")[0]

def write(path, **kw):
    g = Gen(Cfg(**kw))
    text, errs = g.build()
    s = HDR + f"""; @launch grid=(256,1,1) block=(256,1,1) lds=163840
.amdgcn_target "amdgcn-amd-amdhsa--gfx950"
.text
.globl {KN}
.p2align 8
.type {KN},@function
{KN}:
"""
    for x in text:
        s += ("" if x.kind == "label" else "  ") + " ".join(x.text.split()) + "\n"
    s += f"""  s_endpgm
.section .rodata,"a"
.p2align 6
.amdhsa_kernel {KN}
  .amdhsa_next_free_vgpr 512
  .amdhsa_next_free_sgpr 102
  .amdhsa_accum_offset 256
  .amdhsa_group_segment_fixed_size 0
  .amdhsa_kernarg_size 48
  .amdhsa_user_sgpr_count 2
  .amdhsa_user_sgpr_kernarg_segment_ptr 1
  .amdhsa_system_sgpr_workgroup_id_x 1
.end_amdhsa_kernel
"""
    open(path, "w").write(s)
    return errs

if __name__ == "__main__":
    kw = {}
    for a in sys.argv[2:]:
        k, v = a.split("=")
        kw[k] = eval(v)
    write(sys.argv[1], **kw)
```
